```python
import torch

def _softmax(x, axis=-1):
    return torch.softmax(x, dim=axis)
def _gelu(x):
    return torch.nn.functional.gelu(x, approximate="tanh")
def _silu(x):
    return torch.nn.functional.silu(x)
def _sigmoid(x):
    return torch.sigmoid(x)
def _layernorm(x, axis=-1, eps=1e-5):
    m = x.mean(dim=axis, keepdim=True)
    v = x.var(dim=axis, keepdim=True, unbiased=False)
    return (x - m) / torch.sqrt(v + eps)
def _scatter_add(tgt, idx, src, axis=0):
    return tgt.clone().index_add_(axis, idx, src)
def _segment_sum(src, seg, n):
    out = torch.zeros((n,) + src.shape[1:], dtype=src.dtype)
    return out.index_add_(0, seg, src)
def _pad(x, pw):
    flat = tuple(v for pair in reversed(pw) for v in pair)
    return torch.nn.functional.pad(x, flat)

kernel_name = 'recurrent_scan__mha_block_cached__geglu_ffn__decode'

def setup_inputs():

    _w = (lambda a: (lambda t: t.to(torch.bfloat16) if t.is_floating_point() else t)(torch.as_tensor(a)))
    def _A_setup():
        B, Sq, D = 4, 1, 512
        H, Sk, Dh = 32, 8192, 128
        return {
            "x": _w((lambda *s: torch.randn(*s, dtype=torch.bfloat16) * 0.05)(B, Sq, D)),
            "k_cache": _w((lambda *s: torch.randn(*s, dtype=torch.bfloat16) * 1.6)(B, H, Sk, Dh)),
            "v_cache": _w((lambda *s: torch.randn(*s, dtype=torch.bfloat16) * 0.2)(B, H, Sk, Dh)),
            "wq": _w((lambda *s: torch.randn(*s, dtype=torch.bfloat16) * 1.6)(D, H * Dh) * (D ** -0.5)),
            "wo": _w((lambda *s: torch.randn(*s, dtype=torch.bfloat16) * 0.2)(H * Dh, D) * ((H * Dh) ** -0.5)),
        }
    _A_in = _A_setup()

    def _B_setup():
        B, S, D, F = 4, 1, 512, 1376
        return {
            "x": _w((lambda *s: torch.randn(*s, dtype=torch.bfloat16) * 0.05)(B, S, D)),
            "w_gate": _w((lambda *s: torch.randn(*s, dtype=torch.bfloat16) * 0.1)(D, F)),
            "w_up": _w((lambda *s: torch.randn(*s, dtype=torch.bfloat16) * 0.1)(D, F)),
            "w_down": _w((lambda *s: torch.randn(*s, dtype=torch.bfloat16) * 0.1)(F, D)),
        }
    _B_in = _B_setup()

    return {
        "A_x": _A_in["x"],
        "A_k_cache": _A_in["k_cache"],
        "A_v_cache": _A_in["v_cache"],
        "A_wq": _A_in["wq"],
        "A_wo": _A_in["wo"],
        "B_x": _B_in["x"],
        "B_w_gate": _B_in["w_gate"],
        "B_w_up": _B_in["w_up"],
        "B_w_down": _B_in["w_down"],
    }

def reference(A_x, A_k_cache, A_v_cache, A_wq, A_wo, B_x, B_w_gate, B_w_up, B_w_down):
    def _A_ref(x, k_cache, v_cache, wq, wo):
        B, Sq, D = x.shape
        H, Dh = 32, 128
        q = (lambda x, *d: x.permute(*d))((x @ wq).reshape(B, Sq, H, Dh), 0, 2, 1, 3)
        scores = torch.einsum("bhqd,bhkd->bhqk", q, k_cache) * (Dh ** -0.5)
        p = _softmax(scores, axis=-1)
        o = torch.einsum("bhqk,bhkd->bhqd", p, v_cache)
        return (lambda x, *d: x.permute(*d))(o, 0, 2, 1, 3).reshape(B, Sq, H * Dh) @ wo

    def _B_ref(x, w_gate, w_up, w_down):
        return (_gelu(x @ w_gate) * (x @ w_up)) @ w_down

    x = A_x
    xn = _layernorm(x, axis=-1)
    s = _A_ref(xn, A_k_cache, A_v_cache, A_wq, A_wo)
    g = _silu(_B_ref(xn, B_w_gate, B_w_up, B_w_down))
    return x + s * g
```

```python
import re

_VR = re.compile(r'^-?\|?v(\d+)\|?$|^-?\|?v\[(\d+):(\d+)\]\|?$')
_SR = re.compile(r'^s(\d+)$|^s\[(\d+):(\d+)\]$')

def vregs(tok):
    m = _VR.match(tok)
    if not m: return set()
    if m.group(1) is not None: return {int(m.group(1))}
    return set(range(int(m.group(2)), int(m.group(3)) + 1))

def sregs(tok):
    if tok == 'vcc': return {'vcc'}
    if tok in ('vcc_lo', 'vcc_hi'): return {'vcc'}
    if tok == 'exec': return {'exec'}
    m = _SR.match(tok)
    if not m: return set()
    if m.group(1) is not None: return {int(m.group(1))}
    return set(range(int(m.group(2)), int(m.group(3)) + 1))

TRANS = ('v_exp_f32', 'v_log_f32', 'v_rcp_f32', 'v_rsq_f32', 'v_sqrt_f32', 'v_sin_f32', 'v_cos_f32', 'v_rcp_iflag_f32')

class Ins:
    __slots__ = ('text', 'mn', 'kind', 'vw', 'vr', 'sw', 'sr', 'dpp', 'trans', 'dot', 'ops', 'slots', 'wide_store', 'lane_sel')

def parse(text):
    t = text.strip()
    i = Ins(); i.text = t
    parts = t.split(None, 1)
    mn = parts[0]; i.mn = mn
    rest = parts[1] if len(parts) > 1 else ''
    ops = []; cur = ''; depth = 0
    for ch in rest:
        if ch in '[(': depth += 1
        if ch in '])': depth -= 1
        if ch == ',' and depth == 0:
            ops.append(cur.strip()); cur = ''
        else: cur += ch
    if cur.strip(): ops.append(cur.strip())
    mods = ''
    clean = []
    for o in ops:
        p = o.split()
        clean.append(p[0]); mods += ' ' + ' '.join(p[1:])
    i.ops = clean
    i.vw = set(); i.vr = set(); i.sw = set(); i.sr = set()
    i.dpp = any(k in t for k in ('quad_perm', 'row_shl', 'row_shr', 'row_ror', 'row_mirror', 'row_half_mirror', 'row_bcast', 'row_newbcast', 'wave_'))
    base = re.sub(r'_(e32|e64|dpp|sdwa)$', '', mn)
    i.trans = base in TRANS
    i.dot = base.startswith('v_dot')
    i.slots = 1; i.wide_store = False; i.lane_sel = set()
    if mn == 's_nop':
        i.kind = 'nop'; i.slots = int(clean[0], 0) + 1; return i
    if mn.startswith('v_'):
        i.kind = 'valu'
        if base.startswith('v_cmp'):
            i.sw |= sregs(clean[0])
            if base.startswith('v_cmpx'): i.sw.add('exec')
            for o in clean[1:]: i.vr |= vregs(o); i.sr |= sregs(o)
        elif base in ('v_readlane_b32', 'v_readfirstlane_b32'):
            i.sw |= sregs(clean[0]); i.vr |= vregs(clean[1])
            if base == 'v_readlane_b32': i.lane_sel |= sregs(clean[2])
        elif base == 'v_writelane_b32':
            i.vw |= vregs(clean[0]); i.vr |= vregs(clean[0]); i.sr |= sregs(clean[1]); i.lane_sel |= sregs(clean[2])
        elif base in ('v_permlane32_swap_b32', 'v_permlane16_swap_b32'):
            i.vw |= vregs(clean[0]) | vregs(clean[1]); i.vr |= i.vw
        elif base in ('v_add_co_u32', 'v_sub_co_u32', 'v_subrev_co_u32', 'v_addc_co_u32', 'v_subb_co_u32', 'v_div_scale_f32', 'v_mad_u64_u32'):
            i.vw |= vregs(clean[0]); i.sw |= sregs(clean[1])
            for o in clean[2:]: i.vr |= vregs(o); i.sr |= sregs(o)
        else:
            i.vw |= vregs(clean[0])
            for o in clean[1:]: i.vr |= vregs(o); i.sr |= sregs(o)
            if base in ('v_fmac_f32', 'v_dot2c_f32_bf16', 'v_dot2c_f32_f16', 'v_pk_fmac_f16', 'v_mac_f32') or i.dpp:
                i.vr |= vregs(clean[0])
            if base in ('v_div_fmas_f32',): i.sr.add('vcc')
            if base == 'v_cndmask_b32' and len(clean) == 3: i.sr.add('vcc')
    elif mn.startswith(('buffer_', 'global_', 'flat_', 'scratch_')):
        i.kind = 'vmem'
        allv = set()
        for o in clean: allv |= vregs(o); i.sr |= sregs(o)
        if 'load' in mn and ' lds' not in (' ' + mods):
            i.vw |= vregs(clean[0])
            for o in clean[1:]: i.vr |= vregs(o)
        elif 'atomic' in mn:
            i.vr |= allv
            if 'sc0' in mods and mn.startswith('global_'): i.vw |= vregs(clean[0])
            if 'sc0' in mods and mn.startswith('buffer_'): i.vw |= vregs(clean[0])
        else:
            i.vr |= allv
            if mn.endswith(('x3', 'x4')): i.wide_store = True
    elif mn.startswith('ds_'):
        i.kind = 'ds'
        if mn.startswith(('ds_read', 'ds_bpermute', 'ds_permute', 'ds_swizzle')) or '_rtn' in mn:
            i.vw |= vregs(clean[0])
            for o in clean[1:]: i.vr |= vregs(o)
        else:
            for o in clean: i.vr |= vregs(o)
    elif mn.startswith('s_'):
        i.kind = 'salu'
        if mn.startswith(('s_cmp', 's_bitcmp', 's_waitcnt', 's_barrier', 's_branch', 's_cbranch', 's_endpgm', 's_setprio', 's_sleep')):
            for o in clean: i.sr |= sregs(o)
            if 'vcc' in mn: i.sr.add('vcc')
            if 'exec' in mn: i.sr.add('exec')
        else:
            if clean: i.sw |= sregs(clean[0])
            for o in clean[1:]: i.sr |= sregs(o)
            if 'saveexec' in mn: i.sw.add('exec')
    else:
        i.kind = 'other'
    return i

class Asm:
    def __init__(self):
        self.out = []
        self.hist = []
        self.nops = 0
    def raw(self, s):
        self.out.append(s)
    def label(self, name):
        self.out.append(name + ':')
    def fence(self, n=5):
        d = 0
        for h in reversed(self.hist):
            if h.kind == 'valu': break
            d += h.slots
            if d >= n: return
        if n - d > 0: self.emit('s_nop %d' % (n - d - 1))
    def need(self, i):
        need = 0; d = 0
        for h in reversed(self.hist):
            if d >= 6: break
            req = 0
            if h.kind == 'valu':
                if i.kind == 'valu':
                    if i.dpp and (h.vw & i.vr): req = max(req, 2)
                    if i.dpp and 'exec' in h.sw: req = max(req, 5)
                    if h.trans and not i.trans and (h.vw & i.vr): req = max(req, 1)
                    if h.trans and i.trans and (h.vw & i.vr): req = max(req, 1)
                    if ('readlane' in i.mn or 'readfirstlane' in i.mn) and (h.vw & i.vr): req = max(req, 1)
                    if 'permlane' in i.mn and (h.vw & i.vr): req = max(req, 2)
                    if h.sw & i.sr: req = max(req, 2)
                    if h.sw & i.lane_sel: req = max(req, 4)
                    if 'v_div_fmas' in i.mn and 'vcc' in h.sw: req = max(req, 4)
                    if 'exec' in h.sw and ('lane' in i.mn): req = max(req, 4)
                if i.kind in ('vmem',) and (h.sw & i.sr): req = max(req, 5)
                if i.kind == 'salu' and (h.sw & i.sr): req = max(req, 2)
                if h.dot:
                    if (h.vw & i.vr) or (h.vw & i.vw):
                        same = (h.mn == i.mn)
                        if same:
                            srcab = set()
                            for o in i.ops[1:3]: srcab |= vregs(o)
                            if h.vw & srcab: req = max(req, 3)
                        else:
                            req = max(req, 3)
            if h.kind == 'vmem' and h.wide_store and i.kind == 'valu' and (h.vr & i.vw):
                req = max(req, 2)
            if h.kind == 'vmem' and h.wide_store and i.kind != 'valu' and (h.vr & i.vw):
                req = max(req, 1)
            if req - d > need: need = req - d
            d += h.slots
        return need
    def emit(self, text):
        for line in text.split('\n'):
            line = line.strip()
            if not line: continue
            if line.endswith(':'):
                self.label(line[:-1]); continue
            if line.startswith((';', '.')):
                self.out.append(line); continue
            code = line.split(';')[0].strip()
            i = parse(code)
            n = self.need(i)
            if n > 0:
                nop = parse('s_nop %d' % (n - 1))
                self.out.append('  s_nop %d' % (n - 1)); self.hist.append(nop); self.nops += 1
            self.out.append('  ' + line)
            self.hist.append(i)
            if len(self.hist) > 12: self.hist = self.hist[-12:]
    __call__ = emit
    def text(self):
        return '\n'.join(self.out) + '\n'
```

```python
import sys
from asmlib import Asm

KA = "attn_ffn_kernel"
KB = "final_kernel"
LOG2E = 0x3fb8aa3b
SCALE = 0x3db504f3
DPPF = "row_mask:0xf bank_mask:0xf"

WS_Y, WS_ML, WS_FF = 0, 0x80000, 0x81000
NFF = 43
STAMP = 0x3f000000
L_QP, L_AP, L_AML, L_YP, L_FP, L_END = 0, 2048, 4096, 8192, 16384, 49152

def vr(a, n): return "v[%d:%d]" % (a, a + n - 1) if n > 1 else "v%d" % a

def rnd_bf16(a, x, t):
    a("v_cvt_pk_bf16_f32 v%d, v%d, v%d" % (t, x, x))
    a("v_and_b32 v%d, 0xffff0000, v%d" % (x, t))

def wave_allreduce(a, x, t0, t1, op="v_add_f32"):
    a("%s_dpp v%d, v%d, v%d quad_perm:[1,0,3,2] %s" % (op, x, x, x, DPPF))
    a("%s_dpp v%d, v%d, v%d quad_perm:[2,3,0,1] %s" % (op, x, x, x, DPPF))
    a("%s_dpp v%d, v%d, v%d row_half_mirror %s" % (op, x, x, x, DPPF))
    a("%s_dpp v%d, v%d, v%d row_ror:8 %s" % (op, x, x, x, DPPF))
    cross_rows(a, x, t0, t1, op)

def cross_rows(a, x, t0, t1, op="v_add_f32"):
    a("v_mov_b32 v%d, v%d" % (t0, x))
    a("v_mov_b32 v%d, v%d" % (t1, x))
    a("v_permlane32_swap_b32 v%d, v%d" % (t0, t1))
    a("%s v%d, v%d, v%d" % (op, x, t0, t1))
    a("v_mov_b32 v%d, v%d" % (t0, x))
    a("v_mov_b32 v%d, v%d" % (t1, x))
    a("v_permlane16_swap_b32 v%d, v%d" % (t0, t1))
    a("%s v%d, v%d, v%d" % (op, x, t0, t1))

def reduce8_rows(a, acc):
    for i in range(4): a("v_permlane32_swap_b32 v%d, v%d" % (acc + i, acc + i + 4))
    for i in range(4): a("v_add_f32 v%d, v%d, v%d" % (acc + i, acc + i, acc + i + 4))
    for i in range(2): a("v_permlane16_swap_b32 v%d, v%d" % (acc + i, acc + i + 2))
    for i in range(2): a("v_add_f32 v%d, v%d, v%d" % (acc + i, acc + i, acc + i + 2))

def layernorm(a, xr, xn, t):
    for k in range(4):
        a("v_lshlrev_b32 v%d, 16, v%d" % (xn + 2 * k, xr + k))
        a("v_and_b32 v%d, 0xffff0000, v%d" % (xn + 2 * k + 1, xr + k))
    s = t; u = t + 1; w = t + 2; m = t + 3; r = t + 4; e = t + 5
    a("v_add_f32 v%d, v%d, v%d" % (s, xn, xn + 1))
    for k in range(2, 8): a("v_add_f32 v%d, v%d, v%d" % (s, s, xn + k))
    wave_allreduce(a, s, u, w)
    a("v_mul_f32 v%d, 0x3b000000, v%d" % (m, s))
    a("v_sub_f32 v%d, v%d, v%d" % (u, xn, m))
    a("v_mul_f32 v%d, v%d, v%d" % (s, u, u))
    for k in range(1, 8):
        a("v_sub_f32 v%d, v%d, v%d" % (u, xn + k, m))
        a("v_fmac_f32 v%d, v%d, v%d" % (s, u, u))
    wave_allreduce(a, s, u, w)
    a("v_mul_f32 v%d, 0x3b000000, v%d" % (s, s))
    rnd_bf16(a, s, u)
    a("v_add_f32 v%d, 0x3727c5ac, v%d" % (s, s))
    rnd_bf16(a, s, u)
    a("v_sqrt_f32 v%d, v%d" % (s, s))
    rnd_bf16(a, s, u)
    rnd_bf16(a, m, u)
    a("v_rcp_f32 v%d, v%d" % (r, s))
    for k in range(8):
        x = xn + k
        a("v_sub_f32 v%d, v%d, v%d" % (x, x, m))
        rnd_bf16(a, x, u)
        a("v_mul_f32 v%d, v%d, v%d" % (w, x, r))
        a("v_fma_f32 v%d, -v%d, v%d, v%d" % (e, w, s, x))
        a("v_fma_f32 v%d, v%d, v%d, v%d" % (x, e, r, w))
        rnd_bf16(a, x, u)

def stamp(a, idx, cfg, sw="s63"):
    if not cfg.get("stamps"): return
    a("s_memrealtime s[60:61]")
    a("s_waitcnt lgkmcnt(0)")
    a("v_mov_b32 v250, s60\nv_mov_b32 v251, s61")
    a("s_lshl_b32 s62, s2, 3\ns_add_u32 s62, s62, %s\ns_lshl_b32 s62, s62, 7" % sw)
    a("s_add_u32 s62, s62, %d" % (STAMP + 0x200000 + idx * 8))
    a("v_mov_b32 v252, s62")
    a("global_store_dwordx2 v252, v[250:251], s[26:27]")

def gen_attn(a, cfg):
    NL = 8
    NT = 4096 // 32 // 4
    kflags = cfg.get("kv", "nt")
    wflags = cfg.get("w", "")
    a.raw(".p2align 8\n.globl %s\n.type %s,@function\n%s:" % (KA, KA, KA))
    a("s_cmp_ge_u32 s2, 256\ns_cbranch_scc1 A_end")
    a("s_load_dwordx8 s[4:11], s[0:1], 0")
    a("s_load_dwordx2 s[12:13], s[0:1], 32")
    a("s_load_dwordx4 s[16:19], s[0:1], 48")
    a("s_load_dwordx2 s[20:21], s[0:1], 64")
    a("s_load_dwordx2 s[26:27], s[0:1], 88")
    a("v_lshrrev_b32 v2, 6, v0")
    a("v_and_b32 v1, 63, v0")
    a("v_readfirstlane_b32 s3, v2")
    if cfg.get("stamps"): a("s_mov_b32 s63, s3")
    a("s_and_b32 s40, s2, 7\ns_lshr_b32 s44, s2, 3")
    a("s_and_b32 s45, s44, 3\ns_lshl_b32 s45, s45, 3\ns_add_u32 s40, s40, s45")
    a("s_lshr_b32 s41, s44, 2\ns_and_b32 s41, s41, 3")
    a("s_lshr_b32 s42, s44, 4")
    a("s_lshl_b32 s43, s41, 5\ns_add_u32 s43, s43, s40")
    a("s_lshl_b32 s46, s43, 1\ns_add_u32 s46, s46, s42")
    a("v_lshrrev_b32 v3, 4, v1")
    a("v_and_b32 v4, 15, v1")
    a("v_lshlrev_b32 v5, 4, v1")
    a("s_waitcnt lgkmcnt(0)")
    stamp(a, 0, cfg)
    a("s_cmp_ge_u32 s3, 4\ns_cbranch_scc1 A_helper")

    KR, VR = 64, 96
    Q, D, ACC, M, L = 8, 12, 20, 28, 29
    S, T0, T1, AL, PLO, PHI = 30, 31, 32, 33, 34, 35
    a("s_lshl_b32 s47, s46, 20\ns_lshl_b32 s48, s3, 13\ns_add_u32 s47, s47, s48")
    a("s_add_u32 s28, s6, s47\ns_addc_u32 s29, s7, 0\ns_mov_b32 s30, 0x100000\ns_mov_b32 s31, 0x20000")
    a("s_add_u32 s32, s8, s47\ns_addc_u32 s33, s9, 0\ns_mov_b32 s34, 0x100000\ns_mov_b32 s35, 0x20000")
    a("s_mov_b32 s36, 0\ns_mov_b32 s37, 4096")
    def ld(which, j):
        r = (KR if which == 0 else VR) + 4 * j
        a("buffer_load_dwordx4 %s, v5, %s, s%d offen offset:%d %s" % (
            vr(r, 4), "s[28:31]" if which == 0 else "s[32:35]", 36 + j // 4, (j % 4) * 1024, kflags))
    for j in range(NL): ld(0, j)
    for j in range(NL): ld(1, j)
    for i in range(8): a("v_mov_b32 v%d, 0" % (ACC + i))
    a("v_mov_b32 v%d, 0xff7fffff" % M)
    a("v_mov_b32 v%d, 0" % L)
    a("s_mov_b32 s50, 0xcccccccc\ns_mov_b32 s51, 0xcccccccc")
    a("s_mov_b32 s52, 0x%x" % SCALE)
    a("s_mov_b32 s53, 0x%x" % LOG2E)
    a("v_lshlrev_b32 v6, 5, v4")
    a("s_barrier")
    for w in range(4):
        a("ds_read_b128 %s, v6 offset:%d" % (vr(32 + 8 * w, 4), L_QP + w * 512))
        a("ds_read_b128 %s, v6 offset:%d" % (vr(36 + 8 * w, 4), L_QP + w * 512 + 16))
    a("s_waitcnt lgkmcnt(0)")
    for i in range(8):
        a("v_add_f32 v%d, v%d, v%d" % (32 + i, 32 + i, 40 + i))
        a("v_add_f32 v%d, v%d, v%d" % (48 + i, 48 + i, 56 + i))
    for i in range(8):
        a("v_add_f32 v%d, v%d, v%d" % (32 + i, 32 + i, 48 + i))
    for k in range(4):
        a("v_cvt_pk_bf16_f32 v%d, v%d, v%d" % (Q + k, 32 + 2 * k, 33 + 2 * k))
    stamp(a, 1, cfg)

    def lane_of(j): return 8 * (j & 1) + 4 * ((j >> 1) & 1) + 2 * (j >> 2)
    def tile(last):
        for j in range(NL):
            a("s_waitcnt vmcnt(%d)" % (15 if not last else 15 - j))
            r = KR + 4 * j
            a("v_dot2_f32_bf16 v%d, v%d, v%d, 0" % (D + j, r, Q))
            for k in range(1, 4):
                a("v_dot2_f32_bf16 v%d, v%d, v%d, v%d" % (D + j, r + k, Q + k, D + j))
            if not last: ld(0, j)
        for k in range(4):
            a("v_add_f32_dpp v%d, v%d, v%d row_ror:8 row_mask:0xf bank_mask:0x3" % (D + 2 * k, D + 2 * k, D + 2 * k))
        for k in range(4):
            a("v_add_f32_dpp v%d, v%d, v%d row_ror:8 row_mask:0xf bank_mask:0xc" % (D + 2 * k, D + 2 * k + 1, D + 2 * k + 1))
        for k in range(2):
            a("v_add_f32_dpp v%d, v%d, v%d row_half_mirror row_mask:0xf bank_mask:0x5" % (D + 4 * k, D + 4 * k, D + 4 * k))
        for k in range(2):
            a("v_add_f32_dpp v%d, v%d, v%d row_half_mirror row_mask:0xf bank_mask:0xa" % (D + 4 * k, D + 4 * k + 2, D + 4 * k + 2))
        a("v_add_f32_dpp v%d, v%d, v%d quad_perm:[2,3,0,1] %s" % (T0, D, D, DPPF))
        a("v_add_f32_dpp v%d, v%d, v%d quad_perm:[2,3,0,1] %s" % (T1, D + 4, D + 4, DPPF))
        a("v_cndmask_b32 v%d, v%d, v%d, s[50:51]" % (S, T0, T1))
        a("v_add_f32_dpp v%d, v%d, v%d quad_perm:[1,0,3,2] %s" % (S, S, S, DPPF))
        rnd_bf16(a, S, T0)
        a("v_mul_f32 v%d, s52, v%d" % (S, S))
        rnd_bf16(a, S, T0)
        a("v_max_f32_dpp v%d, v%d, v%d row_ror:8 %s" % (T0, S, S, DPPF))
        a("v_max_f32_dpp v%d, v%d, v%d row_half_mirror %s" % (T0, T0, T0, DPPF))
        a("v_max_f32_dpp v%d, v%d, v%d quad_perm:[2,3,0,1] %s" % (T0, T0, T0, DPPF))
        a("v_max_f32 v%d, v%d, v%d" % (T0, T0, M))
        a("v_sub_f32 v%d, v%d, v%d" % (AL, M, T0))
        a("v_sub_f32 v%d, v%d, v%d" % (S, S, T0))
        a("v_mov_b32 v%d, v%d" % (M, T0))
        a("v_mul_f32 v%d, s53, v%d" % (AL, AL))
        a("v_mul_f32 v%d, s53, v%d" % (S, S))
        a("v_exp_f32 v%d, v%d" % (AL, AL))
        a("v_exp_f32 v%d, v%d" % (S, S))
        for i in range(8): a("v_mul_f32 v%d, v%d, v%d" % (ACC + i, ACC + i, AL))
        a("v_fma_f32 v%d, v%d, v%d, v%d" % (L, L, AL, S))
        a("v_cvt_pk_bf16_f32 v%d, v%d, 0" % (PLO, S))
        a("v_cvt_pk_bf16_f32 v%d, 0, v%d" % (PHI, S))
        for j in range(NL):
            a("s_waitcnt vmcnt(%d)" % (15 if not last else 7 - j))
            r = VR + 4 * j
            for k in range(4):
                a("v_dot2c_f32_bf16_dpp v%d, v%d, v%d row_newbcast:%d %s" % (ACC + 2 * k, PLO, r + k, lane_of(j), DPPF))
                a("v_dot2c_f32_bf16_dpp v%d, v%d, v%d row_newbcast:%d %s" % (ACC + 2 * k + 1, PHI, r + k, lane_of(j), DPPF))
            if not last: ld(1, j)
    a("s_mov_b32 s38, %d" % (NT - 1))
    a.fence()
    a.label("A_loop")
    a("s_add_u32 s36, s36, 32768\ns_add_u32 s37, s37, 32768")
    tile(False)
    a("s_sub_u32 s38, s38, 1\ns_cmp_lg_u32 s38, 0")
    a.fence()
    a("s_cbranch_scc1 A_loop")
    tile(True)
    stamp(a, 2, cfg)
    a("v_mov_b32 v%d, v%d" % (T0, M))
    cross_rows(a, T0, T1, AL, "v_max_f32")
    a("v_sub_f32 v%d, v%d, v%d" % (AL, M, T0))
    a("v_mul_f32 v%d, s53, v%d" % (AL, AL))
    a("v_exp_f32 v%d, v%d" % (AL, AL))
    a("v_add_f32_dpp v%d, v%d, v%d row_ror:8 %s" % (L, L, L, DPPF))
    a("v_add_f32_dpp v%d, v%d, v%d row_half_mirror %s" % (L, L, L, DPPF))
    a("v_add_f32_dpp v%d, v%d, v%d quad_perm:[2,3,0,1] %s" % (L, L, L, DPPF))
    a("v_mul_f32 v%d, v%d, v%d" % (L, L, AL))
    for i in range(8): a("v_mul_f32 v%d, v%d, v%d" % (ACC + i, ACC + i, AL))
    cross_rows(a, L, T1, S)
    reduce8_rows(a, ACC)
    a("v_lshlrev_b32 v7, 3, v3\nv_add_u32 v7, v7, v6")
    a("s_lshl_b32 s48, s3, 9\nv_add_u32 v7, s48, v7")
    a("ds_write_b64 v7, %s offset:%d" % (vr(ACC, 2), L_AP))
    a("v_mov_b32 v%d, v%d\nv_mov_b32 v%d, v%d" % (36, T0, 37, L))
    a("s_lshl_b32 s48, s3, 3\nv_mov_b32 v7, s48")
    a("ds_write_b64 v7, v[36:37] offset:%d" % L_AML)
    a("s_waitcnt lgkmcnt(0)")
    a("s_barrier")
    a("s_and_b32 s48, s2, 1\ns_lshr_b32 s49, s2, 1\ns_cmp_lt_u32 s49, %d\ns_cselect_b32 s54, 1, 0\ns_cmp_eq_u32 s48, 0\ns_cselect_b32 s54, s54, 0" % NFF)
    a("s_cmp_eq_u32 s54, 0\ns_cbranch_scc1 A_join")
    a("v_lshlrev_b32 v7, 5, v0")
    for p in range(4):
        a("ds_read_b128 %s, v7 offset:%d" % (vr(64 + 8 * p, 4), L_FP + p * 8192))
        a("ds_read_b128 %s, v7 offset:%d" % (vr(68 + 8 * p, 4), L_FP + p * 8192 + 16))
    a("s_waitcnt lgkmcnt(0)")
    for i in range(8):
        a("v_add_f32 v%d, v%d, v%d" % (64 + i, 64 + i, 72 + i))
        a("v_add_f32 v%d, v%d, v%d" % (80 + i, 80 + i, 88 + i))
    for i in range(8):
        a("v_add_f32 v%d, v%d, v%d" % (64 + i, 64 + i, 80 + i))
    a("s_lshl_b32 s48, s49, 13\ns_add_u32 s48, s48, %d\nv_add_u32 v7, s48, v7" % WS_FF)
    a("global_store_dwordx4 v7, v[64:67], s[26:27]")
    a("global_store_dwordx4 v7, v[68:71], s[26:27] offset:16")
    a("s_branch A_join")

    a.label("A_helper")
    W = 64
    XR, XN, XL, HA = 8, 12, 20, 28
    a("s_sub_u32 s3, s3, 4")
    a("s_lshl_b32 s48, s3, 2\nv_add_u32 v6, s48, v4\nv_and_b32 v6, 15, v6\nv_lshlrev_b32 v6, 4, v6")
    a("v_lshl_add_u32 v6, v3, 8, v6")
    a("s_lshl_b32 s48, s41, 10\nv_add_u32 v6, s48, v6")
    a("global_load_dwordx4 %s, v6, s[4:5]" % vr(XR, 4))
    a("s_lshl_b32 s48, s40, 8")
    a("s_add_u32 s28, s10, s48\ns_addc_u32 s29, s11, 0\ns_mov_b32 s30, 0x400000\ns_mov_b32 s31, 0x20000")
    a("v_lshlrev_b32 v7, 20, v3\nv_lshl_add_u32 v7, v4, 4, v7")
    a("s_lshl_b32 s36, s3, 18")
    for n in range(32):
        a("buffer_load_dwordx4 %s, v7, s[28:31], s36 offen %s" % (vr(W + 4 * n, 4), wflags))
        if n < 31: a("s_add_u32 s36, s36, 8192")
    for i in range(8): a("v_mov_b32 v%d, 0" % (HA + i))
    a("s_waitcnt vmcnt(32)")
    layernorm(a, XR, XN, 36)
    for i in range(8): a("v_lshrrev_b32 v%d, 16, v%d" % (XL + i, XN + i))
    for n in range(32):
        k, i = n // 8, n % 8
        a("s_waitcnt vmcnt(%d)" % (31 - n))
        for r in range(4):
            a("v_dot2c_f32_bf16_dpp v%d, v%d, v%d row_newbcast:%d %s" % (HA + 2 * r, XL + i, W + 4 * n + r, k, DPPF))
            a("v_dot2c_f32_bf16_dpp v%d, v%d, v%d row_newbcast:%d %s" % (HA + 2 * r + 1, XN + i, W + 4 * n + r, k, DPPF))
    reduce8_rows(a, HA)
    a("v_lshlrev_b32 v6, 5, v4\nv_lshl_add_u32 v6, v3, 3, v6")
    a("s_lshl_b32 s48, s3, 9\nv_add_u32 v6, s48, v6")
    a("ds_write_b64 v6, %s offset:%d" % (vr(HA, 2), L_QP))
    a("s_waitcnt lgkmcnt(0)")
    a("s_barrier")
    stamp(a, 1, cfg)
    a("s_and_b32 s48, s2, 1\ns_lshr_b32 s49, s2, 1\ns_cmp_lt_u32 s49, %d\ns_cselect_b32 s54, 1, 0\ns_cmp_eq_u32 s48, 0\ns_cselect_b32 s54, s54, 0" % NFF)
    a("s_cmp_eq_u32 s54, 0\ns_cbranch_scc1 A_noffn")
    gen_ffn(a, cfg)
    a.label("A_noffn")
    a("s_lshl_b32 s48, s40, 7\ns_lshl_b32 s44, s3, 5\ns_add_u32 s48, s48, s44\ns_lshl_b32 s48, s48, 10")
    a("s_add_u32 s32, s12, s48\ns_addc_u32 s33, s13, 0\ns_mov_b32 s34, 0x8000\ns_mov_b32 s35, 0x20000")
    a("s_mov_b32 s36, 0")
    for r in range(32):
        a("buffer_load_dwordx4 %s, v5, s[32:35], s36 offen offset:%d %s" % (vr(W + 4 * r, 4), (r % 4) * 1024, wflags))
        if r % 4 == 3 and r < 31: a("s_add_u32 s36, s36, 4096")
    a("s_mov_b32 s53, 0x%x" % LOG2E)
    for i in range(8): a("v_mov_b32 v%d, 0" % (HA + i))
    a("v_mov_b32 v6, 0")
    a("s_lshl_b32 s48, s3, 7\nv_lshl_add_u32 v7, v4, 2, s48")
    a("s_waitcnt vmcnt(0)")
    a("s_barrier")
    a("ds_read_b128 v[36:39], v6 offset:%d" % L_AML)
    a("ds_read_b128 v[40:43], v6 offset:%d" % (L_AML + 16))
    for w in range(4):
        a("ds_read_b32 v%d, v7 offset:%d" % (44 + w, L_AP + w * 512))
        a("ds_read_b32 v%d, v7 offset:%d" % (48 + w, L_AP + w * 512 + 64))
    a("s_waitcnt lgkmcnt(8)")
    a("v_max_f32 v52, v36, v38\nv_max_f32 v53, v40, v42\nv_max_f32 v52, v52, v53")
    for w in range(4):
        a("v_sub_f32 v%d, v%d, v52" % (36 + 2 * w, 36 + 2 * w))
    for w in range(4):
        a("v_mul_f32 v%d, s53, v%d" % (36 + 2 * w, 36 + 2 * w))
    for w in range(4):
        a("v_exp_f32 v%d, v%d" % (36 + 2 * w, 36 + 2 * w))
    a("v_mul_f32 v53, v36, v37")
    for w in range(1, 4): a("v_fmac_f32 v53, v%d, v%d" % (36 + 2 * w, 37 + 2 * w))
    a("s_waitcnt lgkmcnt(0)")
    a("v_mul_f32 v54, v36, v44\nv_mul_f32 v55, v36, v48")
    for w in range(1, 4):
        a("v_fmac_f32 v54, v%d, v%d" % (36 + 2 * w, 44 + w))
        a("v_fmac_f32 v55, v%d, v%d" % (36 + 2 * w, 48 + w))
    a("v_cvt_pk_bf16_f32 v56, v54, 0\nv_cvt_pk_bf16_f32 v57, 0, v54")
    a("v_cvt_pk_bf16_f32 v58, v55, 0\nv_cvt_pk_bf16_f32 v59, 0, v55")
    for r in range(32):
        lo, hi = (56, 57) if r < 16 else (58, 59)
        for k in range(4):
            a("v_dot2c_f32_bf16_dpp v%d, v%d, v%d row_newbcast:%d %s" % (HA + 2 * k, lo, W + 4 * r + k, r % 16, DPPF))
            a("v_dot2c_f32_bf16_dpp v%d, v%d, v%d row_newbcast:%d %s" % (HA + 2 * k + 1, hi, W + 4 * r + k, r % 16, DPPF))
    a("s_lshl_b32 s48, s3, 11\nv_lshl_add_u32 v7, v1, 5, s48")
    a("ds_write_b128 v7, %s offset:%d" % (vr(HA, 4), L_YP))
    a("ds_write_b128 v7, %s offset:%d" % (vr(HA + 4, 4), L_YP + 16))
    a("s_cmp_lg_u32 s3, 0\ns_cbranch_scc1 A_noml")
    a("s_lshl_b32 s48, s46, 3\ns_add_u32 s48, s48, %d\nv_mov_b32 v6, s48" % WS_ML)
    a("v_cmp_eq_u32 vcc, 0, v1")
    a("s_and_saveexec_b64 s[56:57], vcc")
    a("global_store_dwordx2 v6, v[52:53], s[26:27]")
    a("s_mov_b64 exec, s[56:57]")
    a.label("A_noml")
    a("s_waitcnt lgkmcnt(0)")
    a.label("A_join")
    a("s_barrier")
    a("v_lshlrev_b32 v7, 2, v0")
    for p in range(4): a("ds_read_b32 v%d, v7 offset:%d" % (8 + p, L_YP + p * 2048))
    a("s_lshl_b32 s48, s46, 11\nv_add_u32 v6, s48, v7")
    a("s_waitcnt lgkmcnt(0)")
    a("v_add_f32 v8, v8, v9\nv_add_f32 v10, v10, v11\nv_add_f32 v8, v8, v10")
    a("global_store_dword v6, v8, s[26:27] offset:%d" % WS_Y)
    if cfg.get("stamps"):
        stamp(a, 3, cfg)
    a.label("A_end")
    a("s_endpgm")

def gen_ffn(a, cfg):
    wflags = cfg.get("w", "")
    G, U, DW, XN, AG, AU = 64, 96, 128, 160, 192, 224
    a("s_lshl_b32 s55, s49, 5\ns_lshl_b32 s44, s3, 3\ns_add_u32 s55, s55, s44")
    for b in range(4):
        a("global_load_dwordx4 %s, v5, s[4:5] offset:%d" % (vr(36 + 4 * b, 4), b * 1024))
    a("s_lshl_b32 s44, s55, 1")
    a("s_add_u32 s28, s16, s44\ns_addc_u32 s29, s17, 0\ns_mov_b32 s30, %d\ns_mov_b32 s31, 0x20000" % (512 * 2752))
    a("s_add_u32 s32, s18, s44\ns_addc_u32 s33, s19, 0\ns_mov_b32 s34, %d\ns_mov_b32 s35, 0x20000" % (512 * 2752))
    a("s_mov_b32 s45, %d\nv_mul_lo_u32 v6, s45, v1" % (8 * 2752))
    a("s_mov_b32 s36, 0")
    for j in range(8):
        a("buffer_load_dwordx4 %s, v6, s[28:31], s36 offen %s" % (vr(G + 4 * j, 4), wflags))
        a("buffer_load_dwordx4 %s, v6, s[32:35], s36 offen %s" % (vr(U + 4 * j, 4), wflags))
        if j < 7: a("s_add_u32 s36, s36, 2752")
    a("s_lshl_b32 s44, s55, 10")
    a("s_add_u32 s28, s20, s44\ns_addc_u32 s29, s21, 0\ns_mov_b32 s30, 0x2000\ns_mov_b32 s31, 0x20000")
    a("s_mov_b32 s36, 4096")
    for r in range(8):
        a("buffer_load_dwordx4 %s, v5, s[28:31], %s offen offset:%d %s" % (vr(DW + 4 * r, 4), "0" if r < 4 else "s36", (r % 4) * 1024, wflags))
    for i in range(64): a("v_mov_b32 v%d, 0" % (AG + i))
    a("s_waitcnt vmcnt(24)")
    for b in range(4):
        layernorm(a, 36 + 4 * b, XN + 8 * b, 52)
    for j in range(8):
        a("s_waitcnt vmcnt(%d)" % (8 + 2 * (7 - j)))
        for b in range(4):
            a("v_lshrrev_b32 v52, 16, v%d" % (XN + 8 * b + j))
            for k in range(4):
                a("v_dot2c_f32_bf16 v%d, v52, v%d" % (AG + 8 * b + 2 * k, G + 4 * j + k))
                a("v_dot2c_f32_bf16 v%d, v%d, v%d" % (AG + 8 * b + 2 * k + 1, XN + 8 * b + j, G + 4 * j + k))
            for k in range(4):
                a("v_dot2c_f32_bf16 v%d, v52, v%d" % (AU + 8 * b + 2 * k, U + 4 * j + k))
                a("v_dot2c_f32_bf16 v%d, v%d, v%d" % (AU + 8 * b + 2 * k + 1, XN + 8 * b + j, U + 4 * j + k))
    for A in (AG, AU):
        for b0 in range(2):
            for i in range(8): a("v_permlane32_swap_b32 v%d, v%d" % (A + 8 * b0 + i, A + 8 * (b0 + 2) + i))
        for b0 in range(2):
            for i in range(8): a("v_add_f32 v%d, v%d, v%d" % (A + 8 * b0 + i, A + 8 * b0 + i, A + 8 * (b0 + 2) + i))
        for i in range(8): a("v_permlane16_swap_b32 v%d, v%d" % (A + i, A + 8 + i))
        for i in range(8): a("v_add_f32 v%d, v%d, v%d" % (A + i, A + i, A + 8 + i))
        for i in range(4): a("v_add_f32_dpp v%d, v%d, v%d row_ror:8 row_mask:0xf bank_mask:0x3" % (A + i, A + i, A + i))
        for i in range(4): a("v_add_f32_dpp v%d, v%d, v%d row_ror:8 row_mask:0xf bank_mask:0xc" % (A + i, A + i + 4, A + i + 4))
        for i in range(2): a("v_add_f32_dpp v%d, v%d, v%d row_half_mirror row_mask:0xf bank_mask:0x5" % (A + i, A + i, A + i))
        for i in range(2): a("v_add_f32_dpp v%d, v%d, v%d row_half_mirror row_mask:0xf bank_mask:0xa" % (A + i, A + i + 2, A + i + 2))
        a("v_add_f32_dpp v52, v%d, v%d quad_perm:[2,3,0,1] %s" % (A, A, DPPF))
        a("v_add_f32_dpp v53, v%d, v%d quad_perm:[2,3,0,1] %s" % (A + 1, A + 1, DPPF))
        a("s_mov_b32 s50, 0xcccccccc\ns_mov_b32 s51, 0xcccccccc")
        a("v_cndmask_b32 v%d, v52, v53, s[50:51]" % A)
        a("v_add_f32_dpp v%d, v%d, v%d quad_perm:[1,0,3,2] %s" % (A, A, A, DPPF))
    rnd_bf16(a, AG, 52)
    rnd_bf16(a, AU, 52)
    a("v_mul_f32 v52, v%d, v%d" % (AG, AG))
    a("v_mul_f32 v52, v52, v%d" % AG)
    a("s_mov_b32 s44, 0x3d372713")
    a("v_fma_f32 v52, v52, s44, v%d" % AG)
    a("v_mul_f32 v52, 0xc0135761, v52")
    a("v_exp_f32 v52, v52")
    a("v_add_f32 v52, 1.0, v52")
    a("v_rcp_f32 v52, v52")
    a("v_mul_f32 v%d, v%d, v52" % (AG, AG))
    rnd_bf16(a, AG, 52)
    a("v_mul_f32 v%d, v%d, v%d" % (AG, AG, AU))
    rnd_bf16(a, AG, 52)
    a("v_lshrrev_b32 v53, 16, v%d" % AG)
    AD = AU
    for i in range(32): a("v_mov_b32 v%d, 0" % (AD + i))
    for b in range(4):
        for r in range(8):
            ln = 16 * b + 8 * (r >> 2) + 4 * ((r >> 1) & 1) + 2 * (r & 1)
            a("v_readlane_b32 s%d, v53, %d" % (64 + 2 * r, ln))
            a("v_readlane_b32 s%d, v%d, %d" % (65 + 2 * r, AG, ln))
        if b == 0: a("s_waitcnt vmcnt(0)")
        for r in range(8):
            for k in range(4):
                a("v_dot2c_f32_bf16 v%d, s%d, v%d" % (AD + 8 * b + 2 * k, 64 + 2 * r, DW + 4 * r + k))
                a("v_dot2c_f32_bf16 v%d, s%d, v%d" % (AD + 8 * b + 2 * k + 1, 65 + 2 * r, DW + 4 * r + k))
    a("s_lshl_b32 s44, s3, 13\nv_lshl_add_u32 v6, v1, 5, s44")
    for b in range(4):
        a("ds_write_b128 v6, %s offset:%d" % (vr(AD + 8 * b, 4), L_FP + b * 2048))
        a("ds_write_b128 v6, %s offset:%d" % (vr(AD + 8 * b + 4, 4), L_FP + b * 2048 + 16))

def gen_final(a, cfg):
    a.raw(".p2align 8\n.globl %s\n.type %s,@function\n%s:" % (KB, KB, KB))
    a("s_cmp_ge_u32 s2, 64\ns_cbranch_scc1 B_end")
    a("s_load_dwordx2 s[4:5], s[0:1], 0")
    a("s_load_dwordx2 s[6:7], s[0:1], 72")
    a("s_load_dwordx2 s[26:27], s[0:1], 88")
    a("s_lshr_b32 s8, s2, 4\ns_and_b32 s9, s2, 15")
    a("v_and_b32 v1, 7, v0\nv_lshrrev_b32 v2, 3, v0")
    a("s_lshl_b32 s10, s9, 7\nv_lshl_add_u32 v3, v1, 4, s10")
    a("s_lshl_b32 s11, s8, 17\nv_lshl_add_u32 v4, v2, 12, v3\nv_add_u32 v4, s11, v4")
    a("s_lshl_b32 s11, s8, 9\ns_add_u32 s11, s11, %d\nv_lshl_add_u32 v5, v2, 4, s11" % WS_ML)
    a("s_lshl_b32 s11, s8, 11\nv_lshl_add_u32 v6, v2, 13, v3\nv_add_u32 v6, s11, v6")
    a("v_and_b32 v7, 31, v0\ns_lshl_b32 s11, s8, 10\ns_lshl_b32 s12, s9, 6\ns_add_u32 s11, s11, s12\nv_lshl_add_u32 v7, v7, 1, s11")
    a("s_waitcnt lgkmcnt(0)")
    a("s_add_u32 s16, s26, %d\ns_addc_u32 s17, s27, 0\ns_mov_b32 s18, %d\ns_mov_b32 s19, 0x20000" % (WS_FF, NFF * 8192))
    a("global_load_dwordx4 v[8:11], v5, s[26:27]")
    a("global_load_dwordx4 v[12:15], v4, s[26:27] offset:%d" % WS_Y)
    a("global_load_dwordx4 v[16:19], v4, s[26:27] offset:%d" % (WS_Y + 2048))
    a("buffer_load_dwordx4 v[20:23], v6, s[16:19], 0 offen")
    a("v_add_u32 v6, 0x40000, v6")
    a("buffer_load_dwordx4 v[24:27], v6, s[16:19], 0 offen")
    a("global_load_ushort v28, v7, s[4:5]")
    a("s_mov_b32 s13, 0x%x" % LOG2E)
    a("s_waitcnt vmcnt(5)")
    a("v_max_f32 v30, v8, v10")
    a("v_sub_f32 v8, v8, v30\nv_sub_f32 v10, v10, v30")
    a("v_mul_f32 v8, s13, v8\nv_mul_f32 v10, s13, v10")
    a("v_exp_f32 v8, v8\nv_exp_f32 v10, v10")
    a("v_mul_f32 v30, v8, v9\nv_fmac_f32 v30, v10, v11")
    a("v_rcp_f32 v31, v30")
    a("v_fma_f32 v32, -v30, v31, 1.0\nv_fmac_f32 v31, v32, v31")
    a("v_mul_f32 v8, v8, v31\nv_mul_f32 v10, v10, v31")
    a("s_waitcnt vmcnt(3)")
    for i in range(4):
        a("v_mul_f32 v%d, v8, v%d" % (12 + i, 12 + i))
        a("v_fmac_f32 v%d, v10, v%d" % (12 + i, 16 + i))
    a("s_waitcnt vmcnt(1)")
    for i in range(4): a("v_add_f32 v%d, v%d, v%d" % (20 + i, 20 + i, 24 + i))
    for i in range(4): a("v_permlane32_swap_b32 v%d, v%d" % (12 + i, 20 + i))
    for i in range(4): a("v_add_f32 v%d, v%d, v%d" % (12 + i, 12 + i, 20 + i))
    for i in range(2): a("v_permlane16_swap_b32 v%d, v%d" % (12 + i, 14 + i))
    for i in range(2): a("v_add_f32 v%d, v%d, v%d" % (12 + i, 12 + i, 14 + i))
    for i in range(2): a("v_add_f32_dpp v%d, v%d, v%d row_ror:8 %s" % (12 + i, 12 + i, 12 + i, DPPF))
    a("v_lshrrev_b32 v2, 6, v0\nv_lshlrev_b32 v2, 8, v2")
    a("v_bfe_u32 v3, v0, 5, 1\nv_lshl_add_u32 v2, v3, 7, v2")
    a("v_bfe_u32 v3, v0, 4, 1\nv_lshl_add_u32 v2, v3, 3, v2")
    a("v_lshl_add_u32 v2, v1, 4, v2")
    a("ds_write_b64 v2, v[12:13]")
    a("s_waitcnt lgkmcnt(0)")
    a("s_barrier")
    a("v_cmp_gt_u32 vcc, 32, v0")
    a("s_and_saveexec_b64 s[14:15], vcc")
    a("s_cbranch_execz B_end")
    a("v_lshlrev_b32 v2, 2, v0")
    for w in range(4):
        a("ds_read_b32 v%d, v2 offset:%d" % (8 + w, w * 256))
        a("ds_read_b32 v%d, v2 offset:%d" % (12 + w, w * 256 + 128))
    a("s_waitcnt lgkmcnt(0)")
    a("v_add_f32 v8, v8, v9\nv_add_f32 v10, v10, v11\nv_add_f32 v8, v8, v10")
    a("v_add_f32 v12, v12, v13\nv_add_f32 v14, v14, v15\nv_add_f32 v12, v12, v14")
    rnd_bf16(a, 8, 16)
    rnd_bf16(a, 12, 16)
    a("v_mul_f32 v16, 0xbfb8aa3b, v12")
    a("v_exp_f32 v16, v16")
    a("v_add_f32 v16, 1.0, v16")
    a("v_rcp_f32 v17, v16")
    a("v_mul_f32 v12, v12, v17")
    rnd_bf16(a, 12, 16)
    a("v_mul_f32 v8, v8, v12")
    rnd_bf16(a, 8, 16)
    a("s_waitcnt vmcnt(0)")
    a("v_lshlrev_b32 v28, 16, v28")
    a("v_add_f32 v8, v8, v28")
    a("v_cvt_pk_bf16_f32 v8, v8, v8")
    a("global_store_short v7, v8, s[6:7]")
    a.label("B_end")
    a("s_endpgm")

def kd(name, nv, ns):
    return (".amdhsa_kernel %s\n  .amdhsa_next_free_vgpr %d\n  .amdhsa_next_free_sgpr %d\n  .amdhsa_accum_offset %d\n"
            "  .amdhsa_group_segment_fixed_size 0\n  .amdhsa_kernarg_size 96\n  .amdhsa_user_sgpr_count 2\n"
            "  .amdhsa_user_sgpr_kernarg_segment_ptr 1\n  .amdhsa_system_sgpr_workgroup_id_x 1\n"
            "  .amdhsa_float_denorm_mode_32 3\n.end_amdhsa_kernel" % (name, nv, ns, (nv + 3) // 4 * 4))

def gen(cfg):
    a = Asm()
    a.raw("; @launch kernel=%s grid=(256,1,1) block=(512,1,1) lds=%d" % (KA, L_END))
    a.raw("; @launch kernel=%s grid=(64,1,1) block=(256,1,1) lds=1024" % KB)
    a.raw('.amdgcn_target "amdgcn-amd-amdhsa--gfx950"\n.text')
    gen_attn(a, cfg)
    gen_final(a, cfg)
    a.raw('.section .rodata,"a"\n.p2align 6')
    a.raw(kd(KA, 256, 96))
    a.raw(".p2align 6")
    a.raw(kd(KB, 40, 32))
    return a.text()

if __name__ == "__main__":
    import build
    name = sys.argv[1] if len(sys.argv) > 1 else "v1"
    cfg = {}
    for kv in sys.argv[2:]:
        k, v = kv.split("=")
        cfg[k] = int(v) if v.isdigit() else v.replace("+", " ")
    open(name + ".s", "w").write(gen(cfg))
    print("built", build.build(name + ".s"))
```

```python
import sys
from asmlib import Asm

KA = "attn_ffn_kernel"
KB = "final_kernel"
LOG2E = 0x3fb8aa3b
SCALE = 0x3db504f3
DPPF = "row_mask:0xf bank_mask:0xf"

WS_Y, WS_ML, WS_FF = 0, 0x80000, 0x81000
NFF = 43
STAMP = 0x3f000000
L_QP, L_AP, L_AML, L_YP, L_FP, L_END = 0, 2048, 4096, 8192, 16384, 49152

def vr(a, n): return "v[%d:%d]" % (a, a + n - 1) if n > 1 else "v%d" % a

def rnd_bf16(a, x, t):
    a("v_cvt_pk_bf16_f32 v%d, v%d, v%d" % (t, x, x))
    a("v_and_b32 v%d, 0xffff0000, v%d" % (x, t))

def wave_allreduce(a, x, t0, t1, op="v_add_f32"):
    a("%s_dpp v%d, v%d, v%d quad_perm:[1,0,3,2] %s" % (op, x, x, x, DPPF))
    a("%s_dpp v%d, v%d, v%d quad_perm:[2,3,0,1] %s" % (op, x, x, x, DPPF))
    a("%s_dpp v%d, v%d, v%d row_half_mirror %s" % (op, x, x, x, DPPF))
    a("%s_dpp v%d, v%d, v%d row_ror:8 %s" % (op, x, x, x, DPPF))
    cross_rows(a, x, t0, t1, op)

def cross_rows(a, x, t0, t1, op="v_add_f32"):
    a("v_mov_b32 v%d, v%d" % (t0, x))
    a("v_mov_b32 v%d, v%d" % (t1, x))
    a("v_permlane32_swap_b32 v%d, v%d" % (t0, t1))
    a("%s v%d, v%d, v%d" % (op, x, t0, t1))
    a("v_mov_b32 v%d, v%d" % (t0, x))
    a("v_mov_b32 v%d, v%d" % (t1, x))
    a("v_permlane16_swap_b32 v%d, v%d" % (t0, t1))
    a("%s v%d, v%d, v%d" % (op, x, t0, t1))

def reduce8_rows(a, acc):
    for i in range(4): a("v_permlane32_swap_b32 v%d, v%d" % (acc + i, acc + i + 4))
    for i in range(4): a("v_add_f32 v%d, v%d, v%d" % (acc + i, acc + i, acc + i + 4))
    for i in range(2): a("v_permlane16_swap_b32 v%d, v%d" % (acc + i, acc + i + 2))
    for i in range(2): a("v_add_f32 v%d, v%d, v%d" % (acc + i, acc + i, acc + i + 2))

def layernorm(a, xr, xn, t):
    for k in range(4):
        a("v_lshlrev_b32 v%d, 16, v%d" % (xn + 2 * k, xr + k))
        a("v_and_b32 v%d, 0xffff0000, v%d" % (xn + 2 * k + 1, xr + k))
    s = t; u = t + 1; w = t + 2; m = t + 3; r = t + 4; e = t + 5
    a("v_add_f32 v%d, v%d, v%d" % (s, xn, xn + 1))
    for k in range(2, 8): a("v_add_f32 v%d, v%d, v%d" % (s, s, xn + k))
    wave_allreduce(a, s, u, w)
    a("v_mul_f32 v%d, 0x3b000000, v%d" % (m, s))
    a("v_sub_f32 v%d, v%d, v%d" % (u, xn, m))
    a("v_mul_f32 v%d, v%d, v%d" % (s, u, u))
    for k in range(1, 8):
        a("v_sub_f32 v%d, v%d, v%d" % (u, xn + k, m))
        a("v_fmac_f32 v%d, v%d, v%d" % (s, u, u))
    wave_allreduce(a, s, u, w)
    a("v_mul_f32 v%d, 0x3b000000, v%d" % (s, s))
    rnd_bf16(a, s, u)
    a("v_add_f32 v%d, 0x3727c5ac, v%d" % (s, s))
    rnd_bf16(a, s, u)
    a("v_sqrt_f32 v%d, v%d" % (s, s))
    rnd_bf16(a, s, u)
    rnd_bf16(a, m, u)
    a("v_rcp_f32 v%d, v%d" % (r, s))
    for k in range(8):
        x = xn + k
        a("v_sub_f32 v%d, v%d, v%d" % (x, x, m))
        rnd_bf16(a, x, u)
        a("v_mul_f32 v%d, v%d, v%d" % (w, x, r))
        a("v_fma_f32 v%d, -v%d, v%d, v%d" % (e, w, s, x))
        a("v_fma_f32 v%d, v%d, v%d, v%d" % (x, e, r, w))
        rnd_bf16(a, x, u)

def stamp(a, idx, cfg, sw="s63"):
    if not cfg.get("stamps"): return
    a("s_memrealtime s[60:61]")
    a("s_waitcnt lgkmcnt(0)")
    a("v_mov_b32 v250, s60\nv_mov_b32 v251, s61")
    a("s_lshl_b32 s62, s2, 3\ns_add_u32 s62, s62, %s\ns_lshl_b32 s62, s62, 7" % sw)
    a("s_add_u32 s62, s62, %d" % (STAMP + 0x200000 + idx * 8))
    a("v_mov_b32 v252, s62")
    a("global_store_dwordx2 v252, v[250:251], s[26:27]")

def gen_attn(a, cfg):
    NL = 8
    NT = 4096 // 32 // 4
    kflags = cfg.get("kv", "nt")
    wflags = cfg.get("w", "")
    a.raw(".p2align 8\n.globl %s\n.type %s,@function\n%s:" % (KA, KA, KA))
    a("s_cmp_ge_u32 s2, 256\ns_cbranch_scc1 A_end")
    a("s_load_dwordx8 s[4:11], s[0:1], 0")
    a("s_load_dwordx2 s[12:13], s[0:1], 32")
    a("s_load_dwordx4 s[16:19], s[0:1], 48")
    a("s_load_dwordx2 s[20:21], s[0:1], 64")
    a("s_load_dwordx2 s[26:27], s[0:1], 88")
    a("v_lshrrev_b32 v2, 6, v0")
    a("v_and_b32 v1, 63, v0")
    a("v_readfirstlane_b32 s3, v2")
    if cfg.get("stamps"): a("s_mov_b32 s63, s3")
    a("s_and_b32 s40, s2, 7\ns_lshr_b32 s44, s2, 3")
    a("s_and_b32 s45, s44, 3\ns_lshl_b32 s45, s45, 3\ns_add_u32 s40, s40, s45")
    a("s_lshr_b32 s41, s44, 2\ns_and_b32 s41, s41, 3")
    a("s_lshr_b32 s42, s44, 4")
    a("s_lshl_b32 s43, s41, 5\ns_add_u32 s43, s43, s40")
    a("s_lshl_b32 s46, s43, 1\ns_add_u32 s46, s46, s42")
    a("v_lshrrev_b32 v3, 4, v1")
    a("v_and_b32 v4, 15, v1")
    a("v_lshlrev_b32 v5, 4, v1")
    a("s_waitcnt lgkmcnt(0)")
    stamp(a, 0, cfg)
    a("s_cmp_ge_u32 s3, 4\ns_cbranch_scc1 A_helper")

    KR, VR = 64, 96
    Q, D, ACC, M, L = 8, 12, 20, 28, 29
    S, T0, T1, AL, PLO, PHI = 30, 31, 32, 33, 34, 35
    a("s_lshl_b32 s47, s46, 20\ns_lshl_b32 s48, s3, 13\ns_add_u32 s47, s47, s48")
    a("s_add_u32 s28, s6, s47\ns_addc_u32 s29, s7, 0\ns_mov_b32 s30, 0x100000\ns_mov_b32 s31, 0x20000")
    a("s_add_u32 s32, s8, s47\ns_addc_u32 s33, s9, 0\ns_mov_b32 s34, 0x100000\ns_mov_b32 s35, 0x20000")
    a("s_mov_b32 s36, 0\ns_mov_b32 s37, 4096")
    def ld(which, j):
        r = (KR if which == 0 else VR) + 4 * j
        a("buffer_load_dwordx4 %s, v5, %s, s%d offen offset:%d %s" % (
            vr(r, 4), "s[28:31]" if which == 0 else "s[32:35]", 36 + j // 4, (j % 4) * 1024, kflags))
    for j in range(NL): ld(0, j)
    for j in range(NL): ld(1, j)
    for i in range(8): a("v_mov_b32 v%d, 0" % (ACC + i))
    a("v_mov_b32 v%d, 0xff7fffff" % M)
    a("v_mov_b32 v%d, 0" % L)
    a("s_mov_b32 s50, 0xcccccccc\ns_mov_b32 s51, 0xcccccccc")
    a("s_mov_b32 s52, 0x%x" % SCALE)
    a("s_mov_b32 s53, 0x%x" % LOG2E)
    a("v_lshlrev_b32 v6, 5, v4")
    a("s_barrier")
    for w in range(4):
        a("ds_read_b128 %s, v6 offset:%d" % (vr(32 + 8 * w, 4), L_QP + w * 512))
        a("ds_read_b128 %s, v6 offset:%d" % (vr(36 + 8 * w, 4), L_QP + w * 512 + 16))
    a("s_waitcnt lgkmcnt(0)")
    for i in range(8):
        a("v_add_f32 v%d, v%d, v%d" % (32 + i, 32 + i, 40 + i))
        a("v_add_f32 v%d, v%d, v%d" % (48 + i, 48 + i, 56 + i))
    for i in range(8):
        a("v_add_f32 v%d, v%d, v%d" % (32 + i, 32 + i, 48 + i))
    for k in range(4):
        a("v_cvt_pk_bf16_f32 v%d, v%d, v%d" % (Q + k, 32 + 2 * k, 33 + 2 * k))
    stamp(a, 1, cfg)

    def lane_of(j): return 8 * (j & 1) + 4 * ((j >> 1) & 1) + 2 * (j >> 2)
    def tile(last):
        for j in range(NL):
            a("s_waitcnt vmcnt(%d)" % (15 if not last else 15 - j))
            r = KR + 4 * j
            a("v_dot2_f32_bf16 v%d, v%d, v%d, 0" % (D + j, r, Q))
            for k in range(1, 4):
                a("v_dot2_f32_bf16 v%d, v%d, v%d, v%d" % (D + j, r + k, Q + k, D + j))
            if not last: ld(0, j)
        for k in range(4):
            a("v_add_f32_dpp v%d, v%d, v%d row_ror:8 row_mask:0xf bank_mask:0x3" % (D + 2 * k, D + 2 * k, D + 2 * k))
        for k in range(4):
            a("v_add_f32_dpp v%d, v%d, v%d row_ror:8 row_mask:0xf bank_mask:0xc" % (D + 2 * k, D + 2 * k + 1, D + 2 * k + 1))
        for k in range(2):
            a("v_add_f32_dpp v%d, v%d, v%d row_half_mirror row_mask:0xf bank_mask:0x5" % (D + 4 * k, D + 4 * k, D + 4 * k))
        for k in range(2):
            a("v_add_f32_dpp v%d, v%d, v%d row_half_mirror row_mask:0xf bank_mask:0xa" % (D + 4 * k, D + 4 * k + 2, D + 4 * k + 2))
        a("v_add_f32_dpp v%d, v%d, v%d quad_perm:[2,3,0,1] %s" % (T0, D, D, DPPF))
        a("v_add_f32_dpp v%d, v%d, v%d quad_perm:[2,3,0,1] %s" % (T1, D + 4, D + 4, DPPF))
        a("v_cndmask_b32 v%d, v%d, v%d, s[50:51]" % (S, T0, T1))
        a("v_add_f32_dpp v%d, v%d, v%d quad_perm:[1,0,3,2] %s" % (S, S, S, DPPF))
        rnd_bf16(a, S, T0)
        a("v_mul_f32 v%d, s52, v%d" % (S, S))
        rnd_bf16(a, S, T0)
        a("v_max_f32_dpp v%d, v%d, v%d row_ror:8 %s" % (T0, S, S, DPPF))
        a("v_max_f32_dpp v%d, v%d, v%d row_half_mirror %s" % (T0, T0, T0, DPPF))
        a("v_max_f32_dpp v%d, v%d, v%d quad_perm:[2,3,0,1] %s" % (T0, T0, T0, DPPF))
        a("v_max_f32 v%d, v%d, v%d" % (T0, T0, M))
        a("v_sub_f32 v%d, v%d, v%d" % (AL, M, T0))
        a("v_sub_f32 v%d, v%d, v%d" % (S, S, T0))
        a("v_mov_b32 v%d, v%d" % (M, T0))
        a("v_mul_f32 v%d, s53, v%d" % (AL, AL))
        a("v_mul_f32 v%d, s53, v%d" % (S, S))
        a("v_exp_f32 v%d, v%d" % (AL, AL))
        a("v_exp_f32 v%d, v%d" % (S, S))
        for i in range(8): a("v_mul_f32 v%d, v%d, v%d" % (ACC + i, ACC + i, AL))
        a("v_fma_f32 v%d, v%d, v%d, v%d" % (L, L, AL, S))
        a("v_cvt_pk_bf16_f32 v%d, v%d, 0" % (PLO, S))
        a("v_cvt_pk_bf16_f32 v%d, 0, v%d" % (PHI, S))
        for j in range(NL):
            a("s_waitcnt vmcnt(%d)" % (15 if not last else 7 - j))
            r = VR + 4 * j
            for k in range(4):
                a("v_dot2c_f32_bf16_dpp v%d, v%d, v%d row_newbcast:%d %s" % (ACC + 2 * k, PLO, r + k, lane_of(j), DPPF))
                a("v_dot2c_f32_bf16_dpp v%d, v%d, v%d row_newbcast:%d %s" % (ACC + 2 * k + 1, PHI, r + k, lane_of(j), DPPF))
            if not last: ld(1, j)
    a("s_mov_b32 s38, %d" % (NT - 1))
    a.fence()
    a.label("A_loop")
    a("s_add_u32 s36, s36, 32768\ns_add_u32 s37, s37, 32768")
    tile(False)
    a("s_sub_u32 s38, s38, 1\ns_cmp_lg_u32 s38, 0")
    a.fence()
    a("s_cbranch_scc1 A_loop")
    tile(True)
    stamp(a, 2, cfg)
    a("v_mov_b32 v%d, v%d" % (T0, M))
    cross_rows(a, T0, T1, AL, "v_max_f32")
    a("v_sub_f32 v%d, v%d, v%d" % (AL, M, T0))
    a("v_mul_f32 v%d, s53, v%d" % (AL, AL))
    a("v_exp_f32 v%d, v%d" % (AL, AL))
    a("v_add_f32_dpp v%d, v%d, v%d row_ror:8 %s" % (L, L, L, DPPF))
    a("v_add_f32_dpp v%d, v%d, v%d row_half_mirror %s" % (L, L, L, DPPF))
    a("v_add_f32_dpp v%d, v%d, v%d quad_perm:[2,3,0,1] %s" % (L, L, L, DPPF))
    a("v_mul_f32 v%d, v%d, v%d" % (L, L, AL))
    for i in range(8): a("v_mul_f32 v%d, v%d, v%d" % (ACC + i, ACC + i, AL))
    cross_rows(a, L, T1, S)
    reduce8_rows(a, ACC)
    a("v_lshlrev_b32 v7, 3, v3\nv_add_u32 v7, v7, v6")
    a("s_lshl_b32 s48, s3, 9\nv_add_u32 v7, s48, v7")
    a("ds_write_b64 v7, %s offset:%d" % (vr(ACC, 2), L_AP))
    a("v_mov_b32 v%d, v%d\nv_mov_b32 v%d, v%d" % (36, T0, 37, L))
    a("s_lshl_b32 s48, s3, 3\nv_mov_b32 v7, s48")
    a("ds_write_b64 v7, v[36:37] offset:%d" % L_AML)
    a("s_waitcnt lgkmcnt(0)")
    a("s_barrier")
    a("s_and_b32 s48, s2, 1\ns_lshr_b32 s49, s2, 1\ns_cmp_lt_u32 s49, %d\ns_cselect_b32 s54, 1, 0\ns_cmp_eq_u32 s48, 0\ns_cselect_b32 s54, s54, 0" % NFF)
    a("s_cmp_eq_u32 s54, 0\ns_cbranch_scc1 A_join")
    a("v_lshlrev_b32 v7, 5, v0")
    for p in range(4):
        a("ds_read_b128 %s, v7 offset:%d" % (vr(64 + 8 * p, 4), L_FP + p * 8192))
        a("ds_read_b128 %s, v7 offset:%d" % (vr(68 + 8 * p, 4), L_FP + p * 8192 + 16))
    a("s_waitcnt lgkmcnt(0)")
    for i in range(8):
        a("v_add_f32 v%d, v%d, v%d" % (64 + i, 64 + i, 72 + i))
        a("v_add_f32 v%d, v%d, v%d" % (80 + i, 80 + i, 88 + i))
    for i in range(8):
        a("v_add_f32 v%d, v%d, v%d" % (64 + i, 64 + i, 80 + i))
    a("s_lshl_b32 s48, s49, 13\ns_add_u32 s48, s48, %d\nv_add_u32 v7, s48, v7" % WS_FF)
    a("global_store_dwordx4 v7, v[64:67], s[26:27]")
    a("global_store_dwordx4 v7, v[68:71], s[26:27] offset:16")
    a("s_branch A_join")

    a.label("A_helper")
    W = 64
    XR, XN, XL, HA = 8, 12, 20, 28
    a("s_sub_u32 s3, s3, 4")
    a("s_lshl_b32 s48, s3, 2\nv_add_u32 v6, s48, v4\nv_and_b32 v6, 15, v6\nv_lshlrev_b32 v6, 4, v6")
    a("v_lshl_add_u32 v6, v3, 8, v6")
    a("s_lshl_b32 s48, s41, 10\nv_add_u32 v6, s48, v6")
    a("global_load_dwordx4 %s, v6, s[4:5]" % vr(XR, 4))
    a("s_lshl_b32 s48, s40, 8")
    a("s_add_u32 s28, s10, s48\ns_addc_u32 s29, s11, 0\ns_mov_b32 s30, 0x400000\ns_mov_b32 s31, 0x20000")
    a("v_lshlrev_b32 v7, 20, v3\nv_lshl_add_u32 v7, v4, 4, v7")
    a("s_lshl_b32 s36, s3, 18")
    for n in range(32):
        a("buffer_load_dwordx4 %s, v7, s[28:31], s36 offen %s" % (vr(W + 4 * n, 4), wflags))
        if n < 31: a("s_add_u32 s36, s36, 8192")
    for i in range(8): a("v_mov_b32 v%d, 0" % (HA + i))
    a("s_waitcnt vmcnt(32)")
    stamp(a, 4, cfg)
    if cfg.get("stamps"): a("s_waitcnt vmcnt(32)")
    layernorm(a, XR, XN, 36)
    stamp(a, 5, cfg)
    for i in range(8): a("v_lshrrev_b32 v%d, 16, v%d" % (XL + i, XN + i))
    for n in range(32):
        k, i = n // 8, n % 8
        a("s_waitcnt vmcnt(%d)" % (31 - n + (2 if cfg.get("stamps") else 0) if n < 31 else 0))
        for r in range(4):
            a("v_dot2c_f32_bf16_dpp v%d, v%d, v%d row_newbcast:%d %s" % (HA + 2 * r, XL + i, W + 4 * n + r, k, DPPF))
            a("v_dot2c_f32_bf16_dpp v%d, v%d, v%d row_newbcast:%d %s" % (HA + 2 * r + 1, XN + i, W + 4 * n + r, k, DPPF))
    reduce8_rows(a, HA)
    a("v_lshlrev_b32 v6, 5, v4\nv_lshl_add_u32 v6, v3, 3, v6")
    a("s_lshl_b32 s48, s3, 9\nv_add_u32 v6, s48, v6")
    a("ds_write_b64 v6, %s offset:%d" % (vr(HA, 2), L_QP))
    a("s_waitcnt lgkmcnt(0)")
    a("s_barrier")
    stamp(a, 1, cfg)
    a("s_and_b32 s48, s2, 1\ns_lshr_b32 s49, s2, 1\ns_cmp_lt_u32 s49, %d\ns_cselect_b32 s54, 1, 0\ns_cmp_eq_u32 s48, 0\ns_cselect_b32 s54, s54, 0" % NFF)
    a("s_cmp_eq_u32 s54, 0\ns_cbranch_scc1 A_noffn")
    gen_ffn(a, cfg)
    a.label("A_noffn")
    a("s_lshl_b32 s48, s40, 7\ns_lshl_b32 s44, s3, 5\ns_add_u32 s48, s48, s44\ns_lshl_b32 s48, s48, 10")
    a("s_add_u32 s32, s12, s48\ns_addc_u32 s33, s13, 0\ns_mov_b32 s34, 0x8000\ns_mov_b32 s35, 0x20000")
    a("s_mov_b32 s36, 0")
    for r in range(32):
        a("buffer_load_dwordx4 %s, v5, s[32:35], s36 offen offset:%d %s" % (vr(W + 4 * r, 4), (r % 4) * 1024, wflags))
        if r % 4 == 3 and r < 31: a("s_add_u32 s36, s36, 4096")
    a("s_mov_b32 s53, 0x%x" % LOG2E)
    for i in range(8): a("v_mov_b32 v%d, 0" % (HA + i))
    a("v_mov_b32 v6, 0")
    a("s_lshl_b32 s48, s3, 7\nv_lshl_add_u32 v7, v4, 2, s48")
    a("s_waitcnt vmcnt(0)")
    a("s_barrier")
    a("ds_read_b128 v[36:39], v6 offset:%d" % L_AML)
    a("ds_read_b128 v[40:43], v6 offset:%d" % (L_AML + 16))
    for w in range(4):
        a("ds_read_b32 v%d, v7 offset:%d" % (44 + w, L_AP + w * 512))
        a("ds_read_b32 v%d, v7 offset:%d" % (48 + w, L_AP + w * 512 + 64))
    a("s_waitcnt lgkmcnt(8)")
    a("v_max_f32 v52, v36, v38\nv_max_f32 v53, v40, v42\nv_max_f32 v52, v52, v53")
    for w in range(4):
        a("v_sub_f32 v%d, v%d, v52" % (36 + 2 * w, 36 + 2 * w))
    for w in range(4):
        a("v_mul_f32 v%d, s53, v%d" % (36 + 2 * w, 36 + 2 * w))
    for w in range(4):
        a("v_exp_f32 v%d, v%d" % (36 + 2 * w, 36 + 2 * w))
    a("v_mul_f32 v53, v36, v37")
    for w in range(1, 4): a("v_fmac_f32 v53, v%d, v%d" % (36 + 2 * w, 37 + 2 * w))
    a("s_waitcnt lgkmcnt(0)")
    a("v_mul_f32 v54, v36, v44\nv_mul_f32 v55, v36, v48")
    for w in range(1, 4):
        a("v_fmac_f32 v54, v%d, v%d" % (36 + 2 * w, 44 + w))
        a("v_fmac_f32 v55, v%d, v%d" % (36 + 2 * w, 48 + w))
    a("v_cvt_pk_bf16_f32 v56, v54, 0\nv_cvt_pk_bf16_f32 v57, 0, v54")
    a("v_cvt_pk_bf16_f32 v58, v55, 0\nv_cvt_pk_bf16_f32 v59, 0, v55")
    for r in range(32):
        lo, hi = (56, 57) if r < 16 else (58, 59)
        for k in range(4):
            a("v_dot2c_f32_bf16_dpp v%d, v%d, v%d row_newbcast:%d %s" % (HA + 2 * k, lo, W + 4 * r + k, r % 16, DPPF))
            a("v_dot2c_f32_bf16_dpp v%d, v%d, v%d row_newbcast:%d %s" % (HA + 2 * k + 1, hi, W + 4 * r + k, r % 16, DPPF))
    a("s_lshl_b32 s48, s3, 11\nv_lshl_add_u32 v7, v1, 5, s48")
    a("ds_write_b128 v7, %s offset:%d" % (vr(HA, 4), L_YP))
    a("ds_write_b128 v7, %s offset:%d" % (vr(HA + 4, 4), L_YP + 16))
    a("s_cmp_lg_u32 s3, 0\ns_cbranch_scc1 A_noml")
    a("s_lshl_b32 s48, s46, 3\ns_add_u32 s48, s48, %d\nv_mov_b32 v6, s48" % WS_ML)
    a("v_cmp_eq_u32 vcc, 0, v1")
    a("s_and_saveexec_b64 s[56:57], vcc")
    a("global_store_dwordx2 v6, v[52:53], s[26:27]")
    a("s_mov_b64 exec, s[56:57]")
    a.label("A_noml")
    a("s_waitcnt lgkmcnt(0)")
    a.label("A_join")
    a("s_barrier")
    a("v_lshlrev_b32 v7, 2, v0")
    for p in range(4): a("ds_read_b32 v%d, v7 offset:%d" % (8 + p, L_YP + p * 2048))
    a("s_lshl_b32 s48, s46, 11\nv_add_u32 v6, s48, v7")
    a("s_waitcnt lgkmcnt(0)")
    a("v_add_f32 v8, v8, v9\nv_add_f32 v10, v10, v11\nv_add_f32 v8, v8, v10")
    a("global_store_dword v6, v8, s[26:27] offset:%d" % WS_Y)
    if cfg.get("stamps"):
        stamp(a, 3, cfg)
    a.label("A_end")
    a("s_endpgm")

def gen_ffn(a, cfg):
    wflags = cfg.get("w", "")
    G, U, DW, XN, AG, AU = 64, 96, 128, 160, 192, 224
    a("s_lshl_b32 s55, s49, 5\ns_lshl_b32 s44, s3, 3\ns_add_u32 s55, s55, s44")
    for b in range(4):
        a("global_load_dwordx4 %s, v5, s[4:5] offset:%d" % (vr(36 + 4 * b, 4), b * 1024))
    a("s_lshl_b32 s44, s55, 1")
    a("s_add_u32 s28, s16, s44\ns_addc_u32 s29, s17, 0\ns_mov_b32 s30, %d\ns_mov_b32 s31, 0x20000" % (512 * 2752))
    a("s_add_u32 s32, s18, s44\ns_addc_u32 s33, s19, 0\ns_mov_b32 s34, %d\ns_mov_b32 s35, 0x20000" % (512 * 2752))
    a("s_mov_b32 s45, %d\nv_mul_lo_u32 v6, s45, v1" % (8 * 2752))
    a("s_mov_b32 s36, 0")
    for j in range(8):
        a("buffer_load_dwordx4 %s, v6, s[28:31], s36 offen %s" % (vr(G + 4 * j, 4), wflags))
        a("buffer_load_dwordx4 %s, v6, s[32:35], s36 offen %s" % (vr(U + 4 * j, 4), wflags))
        if j < 7: a("s_add_u32 s36, s36, 2752")
    a("s_lshl_b32 s44, s55, 10")
    a("s_add_u32 s28, s20, s44\ns_addc_u32 s29, s21, 0\ns_mov_b32 s30, 0x2000\ns_mov_b32 s31, 0x20000")
    a("s_mov_b32 s36, 4096")
    for r in range(8):
        a("buffer_load_dwordx4 %s, v5, s[28:31], %s offen offset:%d %s" % (vr(DW + 4 * r, 4), "0" if r < 4 else "s36", (r % 4) * 1024, wflags))
    for i in range(64): a("v_mov_b32 v%d, 0" % (AG + i))
    a("s_waitcnt vmcnt(24)")
    for b in range(4):
        layernorm(a, 36 + 4 * b, XN + 8 * b, 52)
    for j in range(8):
        a("s_waitcnt vmcnt(%d)" % (8 + 2 * (7 - j)))
        for b in range(4):
            a("v_lshrrev_b32 v52, 16, v%d" % (XN + 8 * b + j))
            for k in range(4):
                a("v_dot2c_f32_bf16 v%d, v52, v%d" % (AG + 8 * b + 2 * k, G + 4 * j + k))
                a("v_dot2c_f32_bf16 v%d, v%d, v%d" % (AG + 8 * b + 2 * k + 1, XN + 8 * b + j, G + 4 * j + k))
            for k in range(4):
                a("v_dot2c_f32_bf16 v%d, v52, v%d" % (AU + 8 * b + 2 * k, U + 4 * j + k))
                a("v_dot2c_f32_bf16 v%d, v%d, v%d" % (AU + 8 * b + 2 * k + 1, XN + 8 * b + j, U + 4 * j + k))
    for A in (AG, AU):
        for b0 in range(2):
            for i in range(8): a("v_permlane32_swap_b32 v%d, v%d" % (A + 8 * b0 + i, A + 8 * (b0 + 2) + i))
        for b0 in range(2):
            for i in range(8): a("v_add_f32 v%d, v%d, v%d" % (A + 8 * b0 + i, A + 8 * b0 + i, A + 8 * (b0 + 2) + i))
        for i in range(8): a("v_permlane16_swap_b32 v%d, v%d" % (A + i, A + 8 + i))
        for i in range(8): a("v_add_f32 v%d, v%d, v%d" % (A + i, A + i, A + 8 + i))
        for i in range(4): a("v_add_f32_dpp v%d, v%d, v%d row_ror:8 row_mask:0xf bank_mask:0x3" % (A + i, A + i, A + i))
        for i in range(4): a("v_add_f32_dpp v%d, v%d, v%d row_ror:8 row_mask:0xf bank_mask:0xc" % (A + i, A + i + 4, A + i + 4))
        for i in range(2): a("v_add_f32_dpp v%d, v%d, v%d row_half_mirror row_mask:0xf bank_mask:0x5" % (A + i, A + i, A + i))
        for i in range(2): a("v_add_f32_dpp v%d, v%d, v%d row_half_mirror row_mask:0xf bank_mask:0xa" % (A + i, A + i + 2, A + i + 2))
        a("v_add_f32_dpp v52, v%d, v%d quad_perm:[2,3,0,1] %s" % (A, A, DPPF))
        a("v_add_f32_dpp v53, v%d, v%d quad_perm:[2,3,0,1] %s" % (A + 1, A + 1, DPPF))
        a("s_mov_b32 s50, 0xcccccccc\ns_mov_b32 s51, 0xcccccccc")
        a("v_cndmask_b32 v%d, v52, v53, s[50:51]" % A)
        a("v_add_f32_dpp v%d, v%d, v%d quad_perm:[1,0,3,2] %s" % (A, A, A, DPPF))
    rnd_bf16(a, AG, 52)
    rnd_bf16(a, AU, 52)
    a("v_mul_f32 v52, v%d, v%d" % (AG, AG))
    a("v_mul_f32 v52, v52, v%d" % AG)
    a("s_mov_b32 s44, 0x3d372713")
    a("v_fma_f32 v52, v52, s44, v%d" % AG)
    a("v_mul_f32 v52, 0xc0135761, v52")
    a("v_exp_f32 v52, v52")
    a("v_add_f32 v52, 1.0, v52")
    a("v_rcp_f32 v52, v52")
    a("v_mul_f32 v%d, v%d, v52" % (AG, AG))
    rnd_bf16(a, AG, 52)
    a("v_mul_f32 v%d, v%d, v%d" % (AG, AG, AU))
    rnd_bf16(a, AG, 52)
    a("v_lshrrev_b32 v53, 16, v%d" % AG)
    AD = AU
    for i in range(32): a("v_mov_b32 v%d, 0" % (AD + i))
    for b in range(4):
        for r in range(8):
            ln = 16 * b + 8 * (r >> 2) + 4 * ((r >> 1) & 1) + 2 * (r & 1)
            a("v_readlane_b32 s%d, v53, %d" % (64 + 2 * r, ln))
            a("v_readlane_b32 s%d, v%d, %d" % (65 + 2 * r, AG, ln))
        if b == 0: a("s_waitcnt vmcnt(0)")
        for r in range(8):
            for k in range(4):
                a("v_dot2c_f32_bf16 v%d, s%d, v%d" % (AD + 8 * b + 2 * k, 64 + 2 * r, DW + 4 * r + k))
                a("v_dot2c_f32_bf16 v%d, s%d, v%d" % (AD + 8 * b + 2 * k + 1, 65 + 2 * r, DW + 4 * r + k))
    a("s_lshl_b32 s44, s3, 13\nv_lshl_add_u32 v6, v1, 5, s44")
    for b in range(4):
        a("ds_write_b128 v6, %s offset:%d" % (vr(AD + 8 * b, 4), L_FP + b * 2048))
        a("ds_write_b128 v6, %s offset:%d" % (vr(AD + 8 * b + 4, 4), L_FP + b * 2048 + 16))

def gen_final(a, cfg):
    a.raw(".p2align 8\n.globl %s\n.type %s,@function\n%s:" % (KB, KB, KB))
    a("s_cmp_ge_u32 s2, 64\ns_cbranch_scc1 B_end")
    a("s_load_dwordx2 s[4:5], s[0:1], 0")
    a("s_load_dwordx2 s[6:7], s[0:1], 72")
    a("s_load_dwordx2 s[26:27], s[0:1], 88")
    a("s_lshr_b32 s8, s2, 4\ns_and_b32 s9, s2, 15")
    a("v_and_b32 v1, 7, v0\nv_lshrrev_b32 v2, 3, v0")
    a("s_lshl_b32 s10, s9, 7\nv_lshl_add_u32 v3, v1, 4, s10")
    a("s_lshl_b32 s11, s8, 17\nv_lshl_add_u32 v4, v2, 12, v3\nv_add_u32 v4, s11, v4")
    a("s_lshl_b32 s11, s8, 9\ns_add_u32 s11, s11, %d\nv_lshl_add_u32 v5, v2, 4, s11" % WS_ML)
    a("s_lshl_b32 s11, s8, 11\nv_lshl_add_u32 v6, v2, 13, v3\nv_add_u32 v6, s11, v6")
    a("v_and_b32 v7, 31, v0\ns_lshl_b32 s11, s8, 10\ns_lshl_b32 s12, s9, 6\ns_add_u32 s11, s11, s12\nv_lshl_add_u32 v7, v7, 1, s11")
    a("s_waitcnt lgkmcnt(0)")
    a("s_add_u32 s16, s26, %d\ns_addc_u32 s17, s27, 0\ns_mov_b32 s18, %d\ns_mov_b32 s19, 0x20000" % (WS_FF, NFF * 8192))
    a("global_load_dwordx4 v[8:11], v5, s[26:27]")
    a("global_load_dwordx4 v[12:15], v4, s[26:27] offset:%d" % WS_Y)
    a("global_load_dwordx4 v[16:19], v4, s[26:27] offset:%d" % (WS_Y + 2048))
    a("buffer_load_dwordx4 v[20:23], v6, s[16:19], 0 offen")
    a("v_add_u32 v6, 0x40000, v6")
    a("buffer_load_dwordx4 v[24:27], v6, s[16:19], 0 offen")
    a("global_load_ushort v28, v7, s[4:5]")
    a("s_mov_b32 s13, 0x%x" % LOG2E)
    a("s_waitcnt vmcnt(5)")
    a("v_max_f32 v30, v8, v10")
    a("v_sub_f32 v8, v8, v30\nv_sub_f32 v10, v10, v30")
    a("v_mul_f32 v8, s13, v8\nv_mul_f32 v10, s13, v10")
    a("v_exp_f32 v8, v8\nv_exp_f32 v10, v10")
    a("v_mul_f32 v30, v8, v9\nv_fmac_f32 v30, v10, v11")
    a("v_rcp_f32 v31, v30")
    a("v_fma_f32 v32, -v30, v31, 1.0\nv_fmac_f32 v31, v32, v31")
    a("v_mul_f32 v8, v8, v31\nv_mul_f32 v10, v10, v31")
    a("s_waitcnt vmcnt(3)")
    for i in range(4):
        a("v_mul_f32 v%d, v8, v%d" % (12 + i, 12 + i))
        a("v_fmac_f32 v%d, v10, v%d" % (12 + i, 16 + i))
    a("s_waitcnt vmcnt(1)")
    for i in range(4): a("v_add_f32 v%d, v%d, v%d" % (20 + i, 20 + i, 24 + i))
    for i in range(4): a("v_permlane32_swap_b32 v%d, v%d" % (12 + i, 20 + i))
    for i in range(4): a("v_add_f32 v%d, v%d, v%d" % (12 + i, 12 + i, 20 + i))
    for i in range(2): a("v_permlane16_swap_b32 v%d, v%d" % (12 + i, 14 + i))
    for i in range(2): a("v_add_f32 v%d, v%d, v%d" % (12 + i, 12 + i, 14 + i))
    for i in range(2): a("v_add_f32_dpp v%d, v%d, v%d row_ror:8 %s" % (12 + i, 12 + i, 12 + i, DPPF))
    a("v_lshrrev_b32 v2, 6, v0\nv_lshlrev_b32 v2, 8, v2")
    a("v_bfe_u32 v3, v0, 5, 1\nv_lshl_add_u32 v2, v3, 7, v2")
    a("v_bfe_u32 v3, v0, 4, 1\nv_lshl_add_u32 v2, v3, 3, v2")
    a("v_lshl_add_u32 v2, v1, 4, v2")
    a("ds_write_b64 v2, v[12:13]")
    a("s_waitcnt lgkmcnt(0)")
    a("s_barrier")
    a("v_cmp_gt_u32 vcc, 32, v0")
    a("s_and_saveexec_b64 s[14:15], vcc")
    a("s_cbranch_execz B_end")
    a("v_lshlrev_b32 v2, 2, v0")
    for w in range(4):
        a("ds_read_b32 v%d, v2 offset:%d" % (8 + w, w * 256))
        a("ds_read_b32 v%d, v2 offset:%d" % (12 + w, w * 256 + 128))
    a("s_waitcnt lgkmcnt(0)")
    a("v_add_f32 v8, v8, v9\nv_add_f32 v10, v10, v11\nv_add_f32 v8, v8, v10")
    a("v_add_f32 v12, v12, v13\nv_add_f32 v14, v14, v15\nv_add_f32 v12, v12, v14")
    rnd_bf16(a, 8, 16)
    rnd_bf16(a, 12, 16)
    a("v_mul_f32 v16, 0xbfb8aa3b, v12")
    a("v_exp_f32 v16, v16")
    a("v_add_f32 v16, 1.0, v16")
    a("v_rcp_f32 v17, v16")
    a("v_mul_f32 v12, v12, v17")
    rnd_bf16(a, 12, 16)
    a("v_mul_f32 v8, v8, v12")
    rnd_bf16(a, 8, 16)
    a("s_waitcnt vmcnt(0)")
    a("v_lshlrev_b32 v28, 16, v28")
    a("v_add_f32 v8, v8, v28")
    a("v_cvt_pk_bf16_f32 v8, v8, v8")
    a("global_store_short v7, v8, s[6:7]")
    a.label("B_end")
    a("s_endpgm")

def kd(name, nv, ns):
    return (".amdhsa_kernel %s\n  .amdhsa_next_free_vgpr %d\n  .amdhsa_next_free_sgpr %d\n  .amdhsa_accum_offset %d\n"
            "  .amdhsa_group_segment_fixed_size 0\n  .amdhsa_kernarg_size 96\n  .amdhsa_user_sgpr_count 2\n"
            "  .amdhsa_user_sgpr_kernarg_segment_ptr 1\n  .amdhsa_system_sgpr_workgroup_id_x 1\n"
            "  .amdhsa_float_denorm_mode_32 3\n.end_amdhsa_kernel" % (name, nv, ns, (nv + 3) // 4 * 4))

def gen(cfg):
    a = Asm()
    a.raw("; @launch kernel=%s grid=(256,1,1) block=(512,1,1) lds=%d" % (KA, L_END))
    a.raw("; @launch kernel=%s grid=(64,1,1) block=(256,1,1) lds=1024" % KB)
    a.raw('.amdgcn_target "amdgcn-amd-amdhsa--gfx950"\n.text')
    gen_attn(a, cfg)
    gen_final(a, cfg)
    a.raw('.section .rodata,"a"\n.p2align 6')
    a.raw(kd(KA, 256, 96))
    a.raw(".p2align 6")
    a.raw(kd(KB, 40, 32))
    return a.text()

if __name__ == "__main__":
    import build
    name = sys.argv[1] if len(sys.argv) > 1 else "v1"
    cfg = {}
    for kv in sys.argv[2:]:
        k, v = kv.split("=")
        cfg[k] = int(v) if v.isdigit() else v.replace("+", " ")
    open(name + ".s", "w").write(gen(cfg))
    print("built", build.build(name + ".s"))
```

```python
import sys, build, math
KN = "recurrent_scan__mha_block_cached__geglu_ffn__decode_kernel"
def gen(N, two=0, ws=1):
    o = []; e = o.append
    e("; @launch grid=(256,1,1) block=(256,1,1) lds=0")
    e('.amdgcn_target "amdgcn-amd-amdhsa--gfx950"')
    e(".text\n.globl %s\n.p2align 8\n.type %s,@function\n%s:" % (KN, KN, KN))
    e("s_cmp_ge_u32 s2, 256\ns_cbranch_scc1 L_end")
    e("s_getreg_b32 s40, hwreg(HW_REG_XCC_ID, 0, 4)\ns_getreg_b32 s41, hwreg(HW_REG_HW_ID)")
    e("s_memrealtime s[30:31]\ns_memtime s[44:45]")
    e("s_load_dwordx4 s[4:7], s[0:1], 8\ns_load_dwordx2 s[20:21], s[0:1], 88")
    e("v_lshrrev_b32 v1, 6, v0\ns_nop 0\nv_readfirstlane_b32 s3, v1")
    e("s_and_b32 s22, s2, 7\ns_lshr_b32 s42, s22, 2")
    e("s_xor_b32 s23, s22, 5\ns_cmp_eq_u32 s42, 0\ns_cselect_b32 s22, s22, s23")
    e("s_lshr_b32 s23, s2, 3\ns_and_b32 s24, s23, 7\ns_lshl_b32 s24, s24, 2\ns_add_u32 s22, s22, s24")
    e("s_lshr_b32 s24, s23, 3\ns_lshl_b32 s24, s24, 5\ns_add_u32 s22, s22, s24")
    e("s_lshl_b32 s23, s22, 21")
    e("s_waitcnt lgkmcnt(0)")
    e("s_add_u32 s8, s4, s23\ns_addc_u32 s9, s5, 0\ns_mov_b32 s10, 0x200000\ns_mov_b32 s11, 0x20000")
    e("s_add_u32 s12, s6, s23\ns_addc_u32 s13, s7, 0\ns_mov_b32 s14, 0x200000\ns_mov_b32 s15, 0x20000")
    e("v_and_b32 v1, 63, v0\nv_lshlrev_b32 v1, 4, v1\nv_mov_b32 v2, 0")
    e("s_lshl_b32 s32, s42, 7\ns_mul_i32 s34, s3, %d\ns_add_u32 s32, s32, s34\ns_lshl_b32 s32, s32, 13" % ws)
    period = 16 * N // math.gcd(16, N) if not two else 8 * N // math.gcd(8, N)
    total = 512
    def toff(it):
        return (it % ws) + (it // ws) * 4 * ws
    def addr(i):
        if not two: return ((i // 8) & 1, toff(i // 16) * 8192 + (i % 8) * 1024)
        return (i // 256, toff((i % 256) // 8) * 8192 + (i % 8) * 1024)
    for i in range(total):
        which, off = addr(i)
        r = 8 + 4 * (i % N)
        if i >= N:
            e("s_waitcnt vmcnt(%d)\nv_xor_b32 v2, v2, v%d" % (N - 1, r))
        if (i % 4) == 0 or i == 0: e("s_add_u32 s33, s32, %d" % (off & ~4095))
        e("buffer_load_dwordx4 v[%d:%d], v1, %s, s33 offen offset:%d nt" % (r, r + 3, "s[8:11]" if which == 0 else "s[12:15]", off & 4095))
    e("s_waitcnt vmcnt(0)")
    for k in range(N): e("v_xor_b32 v2, v2, v%d" % (8 + 4 * k))
    e("s_barrier\ns_memrealtime s[28:29]\ns_memtime s[46:47]\ns_waitcnt lgkmcnt(0)")
    e("s_cmp_lg_u32 s3, 0\ns_cbranch_scc1 L_end")
    e("v_mov_b32 v4, s30\nv_mov_b32 v5, s31\nv_mov_b32 v6, s28\nv_mov_b32 v7, s29")
    e("s_lshl_b32 s22, s2, 4\ns_add_u32 s22, s22, 0x3f000000\nv_mov_b32 v3, s22")
    e("v_cmp_eq_u32 vcc, 0, v0\ns_and_saveexec_b64 s[26:27], vcc")
    e("global_store_dwordx4 v3, v[4:7], s[20:21]")
    e("s_sub_u32 s46, s46, s44")
    e("v_mov_b32 v4, s46\nv_mov_b32 v5, s40\nv_mov_b32 v6, s41\nv_mov_b32 v7, v2")
    e("v_add_u32 v3, 0x100000, v3")
    e("global_store_dwordx4 v3, v[4:7], s[20:21]")
    e("L_end:\ns_endpgm")
    e('.section .rodata,"a"\n.p2align 6\n.amdhsa_kernel %s' % KN)
    e("  .amdhsa_next_free_vgpr 144\n  .amdhsa_next_free_sgpr 64\n  .amdhsa_accum_offset 144")
    e("  .amdhsa_group_segment_fixed_size 0\n  .amdhsa_kernarg_size 96\n  .amdhsa_user_sgpr_count 2")
    e("  .amdhsa_user_sgpr_kernarg_segment_ptr 1\n  .amdhsa_system_sgpr_workgroup_id_x 1\n.end_amdhsa_kernel")
    return "\n".join(o) + "\n"
names = []
for ws in (1, 2, 4, 8, 16, 32):
    n = "q5_w%d" % ws
    open(n + ".s", "w").write(gen(5, 1, ws)); build.build(n + ".s"); names.append(n)
print(" ".join(n + ".co" for n in names))
```
